```python
import torch

def _softmax(x, axis=-1):
    return torch.softmax(x, dim=axis)
def _gelu(x):
    return torch.nn.functional.gelu(x, approximate="tanh")
def _silu(x):
    return torch.nn.functional.silu(x)
def _sigmoid(x):
    return torch.sigmoid(x)
def _layernorm(x, axis=-1, eps=1e-5):
    m = x.mean(dim=axis, keepdim=True)
    v = x.var(dim=axis, keepdim=True, unbiased=False)
    return (x - m) / torch.sqrt(v + eps)
def _scatter_add(tgt, idx, src, axis=0):
    return tgt.clone().index_add_(axis, idx, src)
def _segment_sum(src, seg, n):
    out = torch.zeros((n,) + src.shape[1:], dtype=src.dtype)
    return out.index_add_(0, seg, src)
def _pad(x, pw):
    flat = tuple(v for pair in reversed(pw) for v in pair)
    return torch.nn.functional.pad(x, flat)

kernel_name = 'concat_heads__sliding_block_cached__mha_block_cached__decode'

def setup_inputs():

    _w = (lambda a: (lambda t: t.to(torch.bfloat16) if t.is_floating_point() else t)(torch.as_tensor(a)))
    def _A_setup():
        B, Sq, D = 4, 1, 512
        Hq, Hkv, Sk, Dh = 32, 8, 8192, 128
        assert Hq % Hkv == 0, (Hq, Hkv)
        return {
            "x": _w((lambda *s: torch.randn(*s, dtype=torch.bfloat16) * 0.8)(B, Sq, D)),
            "k_cache": _w((lambda *s: torch.randn(*s, dtype=torch.bfloat16) * 1.6)(B, Hkv, Sk, Dh)),
            "v_cache": _w((lambda *s: torch.randn(*s, dtype=torch.bfloat16) * 0.2)(B, Hkv, Sk, Dh)),
            "wq": _w((lambda *s: torch.randn(*s, dtype=torch.bfloat16) * 1.6)(D, Hq * Dh) * (D ** -0.5)),
            "wo": _w((lambda *s: torch.randn(*s, dtype=torch.bfloat16) * 0.2)(Hq * Dh, D) * ((Hq * Dh) ** -0.5)),
        }
    _A_in = _A_setup()

    def _B_setup():
        B, Sq, D = 4, 1, 512
        H, Sk, Dh = 32, 8192, 128
        return {
            "x": _w((lambda *s: torch.randn(*s, dtype=torch.bfloat16) * 0.8)(B, Sq, D)),
            "k_cache": _w((lambda *s: torch.randn(*s, dtype=torch.bfloat16) * 1.6)(B, H, Sk, Dh)),
            "v_cache": _w((lambda *s: torch.randn(*s, dtype=torch.bfloat16) * 0.2)(B, H, Sk, Dh)),
            "wq": _w((lambda *s: torch.randn(*s, dtype=torch.bfloat16) * 1.6)(D, H * Dh) * (D ** -0.5)),
            "wo": _w((lambda *s: torch.randn(*s, dtype=torch.bfloat16) * 0.2)(H * Dh, D) * ((H * Dh) ** -0.5)),
        }
    _B_in = _B_setup()

    return {
        "A_x": _A_in["x"],
        "A_k_cache": _A_in["k_cache"],
        "A_v_cache": _A_in["v_cache"],
        "A_wq": _A_in["wq"],
        "A_wo": _A_in["wo"],
        "B_x": _B_in["x"],
        "B_k_cache": _B_in["k_cache"],
        "B_v_cache": _B_in["v_cache"],
        "B_wq": _B_in["wq"],
        "B_wo": _B_in["wo"],
    }

def reference(A_x, A_k_cache, A_v_cache, A_wq, A_wo, B_x, B_k_cache, B_v_cache, B_wq, B_wo):
    def _A_ref(x, k_cache, v_cache, wq, wo):
        B, Sq, D = x.shape
        Hq, Dh = 32, 128
        Hkv, Sk = k_cache.shape[1], k_cache.shape[2]
        W = min(4096, max(256, Sk // 4))
        rep = Hq // Hkv
        q = (lambda x, *d: x.permute(*d))((x @ wq).reshape(B, Sq, Hq, Dh), 0, 2, 1, 3)
        k = (lambda x, n, axis: torch.repeat_interleave(x, n, dim=axis))(k_cache[:, :, Sk - W:, :], rep, axis=1)
        v = (lambda x, n, axis: torch.repeat_interleave(x, n, dim=axis))(v_cache[:, :, Sk - W:, :], rep, axis=1)
        scores = torch.einsum("bhqd,bhkd->bhqk", q, k) * (Dh ** -0.5)
        p = _softmax(scores, axis=-1)
        o = torch.einsum("bhqk,bhkd->bhqd", p, v)
        return (lambda x, *d: x.permute(*d))(o, 0, 2, 1, 3).reshape(B, Sq, Hq * Dh) @ wo

    def _B_ref(x, k_cache, v_cache, wq, wo):
        B, Sq, D = x.shape
        H, Dh = 32, 128
        q = (lambda x, *d: x.permute(*d))((x @ wq).reshape(B, Sq, H, Dh), 0, 2, 1, 3)
        scores = torch.einsum("bhqd,bhkd->bhqk", q, k_cache) * (Dh ** -0.5)
        p = _softmax(scores, axis=-1)
        o = torch.einsum("bhqk,bhkd->bhqd", p, v_cache)
        return (lambda x, *d: x.permute(*d))(o, 0, 2, 1, 3).reshape(B, Sq, H * Dh) @ wo

    a = _A_ref(A_x, A_k_cache, A_v_cache, A_wq, A_wo)
    b = _B_ref(B_x, B_k_cache, B_v_cache, B_wq, B_wo)
    return torch.concatenate([a, b], axis=-1)
```

```python
import sys, struct

KNAME = "concat_heads__sliding_block_cached__mha_block_cached__decode_kernel"

def f32(x):
    return "0x%08x" % struct.unpack("<I", struct.pack("<f", x))[0]

class Cfg:
    D = 2
    P = 6
    S = 56
    IA = 16
    IA_STAG = 0
    RSH = 1
    diag = False
    name = KNAME
    spin = 200000
    ld = "nt"
    out_flags = ""
    poll_sleep = 2
    pace = "K1"
    gather_flags = "sc1"
    qg_flags = "sc1"
    a_sleep = 64
    a_delay = 0
    x_nocomp = False
    x_nohelp = False
    x_noA = False

WS_QB, WS_QA = 0x000000, 0x080000
WS_OB, WS_OA = 0x100000, 0x200000
WS_YB, WS_YA = 0x300000, 0x340000
WS_CNT, CNT_STRIDE = 0x380000, 4352
WS_FLAG, FLAG_STRIDE = 0x3B0000, 1024
WS_DIAG = 0x400000
WS_SIZE = 0x500000
L_QB, L_QA, L_FLAG, L_MLB, L_MLA, L_OT = 0x0000, 0x0400, 0x0800, 0x0900, 0x0980, 0x0A00
L_DEPB, L_DEPA, L_WOB, L_WOA, L_END = 0x1000, 0x3000, 0x5000, 0x9000, 0xD000

class Asm:
    def __init__(self):
        self.o = []
        self.q = []
        self.n = 0
    def __call__(self, s):
        self.o.append("    " + s)
    def label(self, s):
        self.o.append(s + ":")
    def cm(self, s):
        self.o.append("    ; " + s)
    def vm(self, s, tag):
        self(s); self.q.append(tag)
    def wait(self, tag, extra=""):
        idx = [i for i, t in enumerate(self.q) if t == tag]
        if not idx:
            if extra: self("s_waitcnt " + extra)
            return
        n = len(self.q) - 1 - idx[-1]
        assert n <= 63
        self(f"s_waitcnt vmcnt({n})" + (" " + extra if extra else ""))
        self.q = self.q[idx[-1] + 1:]
    def waitall(self):
        self("s_waitcnt vmcnt(0)"); self.q = []
    def uid(self, p):
        self.n += 1
        return f"{p}_{self.n}"

def vr(b, n=4):
    return f"v[{b}:{b+n-1}]" if n > 1 else f"v{b}"

def srd(a, d, p, nbytes):
    a(f"s_mov_b32 s{d}, s{p}"); a(f"s_mov_b32 s{d+1}, s{p+1}")
    a(f"s_mov_b32 s{d+2}, 0x{nbytes:x}"); a(f"s_mov_b32 s{d+3}, 0x20000")

P_AX, P_AK, P_AV, P_AWQ, P_AWO, P_BX, P_BK, P_BV = 16, 18, 20, 22, 24, 26, 28, 30
P_BWQ, P_BWO, P_OUT, P_DBG, P_WS = 32, 34, 36, 38, 40
sG, sJ, sW = 4, 5, 3

def stamp(a, c, k):
    if c.diag:
        a(f"s_memrealtime s[{84+2*k}:{85+2*k}]")

def diag_store(a, c, srd_ws):
    if not c.diag:
        return
    a("s_waitcnt lgkmcnt(0)")
    a("s_getreg_b32 s99, hwreg(HW_REG_XCC_ID)")
    for k in range(7):
        a(f"v_mov_b32 v{4+k}, s{84+2*k}")
    a("v_mov_b32 v11, s99")
    a("s_mul_i32 s6, s2, 5"); a("s_add_u32 s6, s6, s3"); a("s_lshl_b32 s6, s6, 5")
    a(f"s_add_u32 s6, s6, 0x{WS_DIAG:x}")
    a("v_mov_b32 v12, s6")
    a("s_mov_b64 exec, 1")
    a(f"buffer_store_dwordx4 v[4:7], v12, s[{srd_ws}:{srd_ws+3}], 0 offen")
    a(f"buffer_store_dwordx4 v[8:11], v12, s[{srd_ws}:{srd_ws+3}], 0 offen offset:16")
    a("s_waitcnt vmcnt(0)")

vKO, vVO, vM0, vM1, vMNB, vLB, vMNA, vLA, vNEG, vNINF, vBP, vT0, vT1, vT2 = range(1, 15)
vQB, vQA, vACB, vACA, vD, vRING = 16, 20, 24, 32, 40, 56
S_KB, S_VB, S_KA, S_VA = 44, 48, 52, 56
sCNT, sPOS, sGB, sAOFF, sC, sMASK, sMB, sCL, sIT, sROT, sAP, sSP = 60, 62, 63, 64, 65, 66, 68, 70, 71, 72, 73, 74
sBB, sOFF = 76, 10

def streamer(a, c):
    D, P, S = c.D, c.P, c.S
    late = []
    def slot(x): return vRING + 32 * x
    def issue_addr(x, kind):
        if kind == "B":
            a(f"s_and_b32 s6, s{sPOS}, 2047")
            a("s_lshr_b32 s7, s6, 9")
            a(f"s_lshl_b32 s{sBB+x}, s7, 2")
            a("s_lshl_b32 s7, s7, 26")
            a("s_and_b32 s6, s6, 511")
            a("s_lshl_b32 s6, s6, 12")
            a("s_or_b32 s6, s6, s7")
            a(f"s_or_b32 s{sOFF+x}, s6, s{sGB}")
        else:
            a(f"s_and_b32 s6, s{sAP}, 127")
            a("s_lshl_b32 s6, s6, 12")
            a(f"s_add_u32 s{sOFF+x}, s6, s{sAOFF}")
            a(f"s_add_u32 s{sAP}, s{sAP}, 32")
    def issue_loads(x, kind, kv):
        s = {("B", 0): S_KB, ("B", 1): S_VB, ("A", 0): S_KA, ("A", 1): S_VA}[(kind, kv)]
        for t in range(4):
            a.vm(f"buffer_load_dwordx4 {vr(slot(x) + 16*kv + 4*t)}, v{vVO if kv else vKO}, s[{s}:{s+3}], s{sOFF+x} offen offset:{t*1024} {c.ld}",
                 ("KV"[kv], x))
    def issue_tile(x, kind):
        issue_addr(x, kind)
        if kind == "B":
            a(f"s_add_u32 s{sPOS}, s{sPOS}, 32")
        issue_loads(x, kind, 0); issue_loads(x, kind, 1)
    def regs(kind):
        return (vQB, vACB, vMNB, vLB) if kind == "B" else (vQA, vACA, vMNA, vLA)
    def qk(x, kind):
        q = regs(kind)[0]
        a.wait(("K", x))
        if c.x_nocomp:
            return
        for t in range(4):
            a(f"v_mfma_f32_16x16x32_bf16 {vr(vD+4*t)}, {vr(slot(x)+4*t)}, {vr(q)}, 0")
        if kind == "B":
            a(f"s_lshl_b64 s[{sMASK}:{sMASK+1}], s[{sMB}:{sMB+1}], s{sBB+x}")
            a(f"v_cndmask_b32 v{vNEG}, v{vNINF}, v{vMNB}, s[{sMASK}:{sMASK+1}]")
    def soft_pv(x, kind):
        q, acc, mn, l = regs(kind)
        neg = vNEG if kind == "B" else mn
        if c.x_nocomp:
            a.wait(("V", x))
            return
        for t in range(4):
            a(f"v_mov_b32_dpp v{vD+4*t}, v{vD+4*t} quad_perm:[0,0,0,0] row_mask:0xf bank_mask:0xf")
        for i in (1, 2, 3):
            for t in range(4):
                a(f"v_add_f32_dpp v{vD+4*t}, v{vD+4*t+i}, v{vD+4*t} quad_perm:[{i},{i},{i},{i}] row_mask:0xf bank_mask:0xf")
        for t in range(4):
            a(f"v_fma_f32 v{vD+4*t+1}, v{vD+4*t}, s{sC}, v{neg}")
        a(f"v_max3_f32 v{vT0}, v{vD+1}, v{vD+5}, v{vD+9}")
        a(f"v_max_f32 v{vT0}, v{vT0}, v{vD+13}")
        a(f"v_cmp_lt_f32 vcc, 0, v{vT0}")
        r, b = a.uid("L_resc"), a.uid("L_back")
        a(f"s_cbranch_vccnz {r}")
        a.label(b)
        late.append((r, b, kind))
        for t in range(4):
            a(f"v_exp_f32 v{vD+4*t+1}, v{vD+4*t+1}")
        for t in range(4):
            a(f"v_add_f32 v{l}, v{l}, v{vD+4*t+1}")
        for t in range(4):
            a(f"v_cvt_pk_bf16_f32 v{vD+4*t+1}, v{vD+4*t+1}, v{vD+4*t+1}")
        for t in range(4):
            a(f"v_and_b32 v{vD+4*t+2}, v{vD+4*t+1}, v{vM0}")
            a(f"v_and_b32 v{vD+4*t+3}, v{vD+4*t+1}, v{vM1}")
        a.wait(("V", x))
        for t in range(4):
            v = slot(x) + 16 + 4 * t
            a(f"v_mfma_f32_16x16x16_bf16 {vr(acc)}, {vr(vD+4*t+2,2)}, {vr(v,2)}, {vr(acc)}")
            a(f"v_mfma_f32_16x16x16_bf16 {vr(acc+4)}, {vr(vD+4*t+2,2)}, {vr(v+2,2)}, {vr(acc+4)}")
    def step(x, kind, nxt):
        qk(x, kind)
        if nxt:
            issue_addr(x, nxt)
            if nxt == "B":
                a(f"s_add_u32 s{sPOS}, s{sPOS}, 32")
            issue_loads(x, nxt, 0)
        else:
            a("s_nop 4")
        soft_pv(x, kind)
        if nxt:
            issue_loads(x, nxt, 1)
    def rescale(r, b, kind):
        q, acc, mn, l = regs(kind)
        neg = vNEG if kind == "B" else mn
        a.label(r)
        a(f"v_max3_f32 v{vT0}, v{vD}, v{vD+4}, v{vD+8}")
        a(f"v_max_f32 v{vT0}, v{vT0}, v{vD+12}")
        a(f"v_mul_f32 v{vT0}, s{sC}, v{vT0}")
        if kind == "B":
            a(f"v_cndmask_b32 v{vT0}, v{vNINF}, v{vT0}, s[{sMASK}:{sMASK+1}]")
        for sw in ("v_permlane16_swap_b32", "v_permlane32_swap_b32"):
            a(f"v_mov_b32 v{vT1}, v{vT0}")
            a("s_nop 1")
            a(f"{sw} v{vT0}, v{vT1}")
            a("s_nop 1")
            a(f"v_max_f32 v{vT0}, v{vT0}, v{vT1}")
        a(f"v_min_f32 v{vT1}, v{mn}, -v{vT0}")
        a(f"v_sub_f32 v{vT2}, v{vT1}, v{mn}")
        a(f"v_exp_f32 v{vT2}, v{vT2}")
        a(f"v_mov_b32 v{mn}, v{vT1}")
        a(f"v_mul_f32 v{l}, v{l}, v{vT2}")
        a(f"ds_bpermute_b32 v{vT0}, v{vBP}, v{vT2}")
        if kind == "B":
            a(f"v_cndmask_b32 v{vNEG}, v{vNINF}, v{mn}, s[{sMASK}:{sMASK+1}]")
        for t in range(4):
            a(f"v_fma_f32 v{vD+4*t+1}, v{vD+4*t}, s{sC}, v{neg}")
        a("s_waitcnt lgkmcnt(0)")
        for i in range(8):
            a(f"v_mul_f32 v{acc+i}, v{acc+i}, v{vT0}")
        a(f"s_branch {b}")
    def deposit(kind):
        q, acc, mn, l = regs(kind)
        dep, ml = (L_DEPB, L_MLB) if kind == "B" else (L_DEPA, L_MLA)
        for sw in ("v_permlane16_swap_b32", "v_permlane32_swap_b32"):
            a(f"v_mov_b32 v{vT1}, v{l}")
            a("s_nop 1")
            a(f"{sw} v{l}, v{vT1}")
            a("s_nop 1")
            a(f"v_add_f32 v{l}, v{l}, v{vT1}")
        a(f"s_lshl_b32 s6, s{sW}, 11")
        a(f"v_add_u32 v{vT0}, s6, v{vVO}")
        a(f"s_lshl_b32 s6, s{sW}, 5")
        a(f"v_and_b32 v{vT1}, 12, v0")
        a(f"v_lshl_add_u32 v{vT1}, v{vT1}, 1, s6")
        a(f"ds_write_b128 v{vT0}, {vr(acc)} offset:{dep - 2048}")
        a(f"ds_write_b128 v{vT0}, {vr(acc+4)} offset:{dep - 2048 + 1024}")
        a(f"v_add_u32 v{vT1}, {ml - 32}, v{vT1}")
        a(f"ds_write2_b32 v{vT1}, v{mn}, v{l} offset0:0 offset1:1")
        a("s_waitcnt lgkmcnt(0)")

    a.label("L_stream")
    stamp(a, c, 0)
    a.cm("lane constants")
    a(f"v_lshlrev_b32 v{vVO}, 4, v0")
    a(f"v_bfe_u32 v{vT0}, v0, 2, 2")
    a(f"v_lshlrev_b32 v{vKO}, 8, v{vT0}")
    a(f"v_lshrrev_b32 v{vT1}, 4, v0")
    a(f"v_lshl_add_u32 v{vKO}, v{vT1}, 6, v{vKO}")
    a(f"v_and_b32 v{vT2}, 3, v0")
    a(f"v_lshl_add_u32 v{vKO}, v{vT2}, 4, v{vKO}")
    a(f"s_lshl_b32 s{sGB}, s{sG}, 21")
    a(f"s_lshl_b32 s6, s{sJ}, 2")
    a(f"s_add_u32 s6, s6, s{sW}")
    a(f"s_sub_u32 s6, s6, 1")
    a(f"s_lshr_b32 s{sROT}, s{sG}, {c.RSH}")
    a(f"s_lshl_b32 s{sROT}, s{sROT}, 5")
    a(f"s_add_u32 s{sPOS}, s{sROT}, s6")
    a(f"s_lshl_b32 s7, s{sG}, 5")
    a(f"s_add_u32 s{sAP}, s7, s6")
    a("s_waitcnt lgkmcnt(0)")
    srd(a, S_KB, P_BK, 1 << 28); srd(a, S_VB, P_BV, 1 << 28)
    a("s_barrier")
    issue_tile(0, "B")
    if c.pace == "V2":
        issue_tile(1, "B")
    srd(a, S_KA, P_AK, 1 << 26); srd(a, S_VA, P_AV, 1 << 26)
    a(f"s_and_b32 s6, s{sG}, 3"); a("s_lshl_b32 s6, s6, 3"); a(f"s_lshr_b32 s7, s{sG}, 2"); a("s_add_u32 s6, s6, s7")
    a("s_lshl_b32 s6, s6, 21"); a(f"s_add_u32 s{sAOFF}, s6, 0x180000")
    a(f"s_mul_i32 s6, s{sG}, {CNT_STRIDE}"); a(f"s_add_u32 s6, s6, 0x{WS_CNT:x}")
    a(f"s_add_u32 s{sCNT}, s{P_WS}, s6"); a(f"s_addc_u32 s{sCNT+1}, s{P_WS+1}, 0")
    a(f"s_mov_b32 s{sC}, {f32(128 ** -0.5 * 1.4426950408889634)}")
    a(f"s_mov_b32 s{sMB}, 0x000f000f"); a(f"s_mov_b32 s{sMB+1}, 0x000f000f")
    a(f"v_mov_b32 v{vNINF}, 0xff800000")
    a(f"v_mov_b32 v{vMNB}, {f32(1e30)}"); a(f"v_mov_b32 v{vMNA}, {f32(1e30)}")
    a(f"v_mov_b32 v{vLB}, 0"); a(f"v_mov_b32 v{vLA}, 0")
    for i in range(16):
        a(f"v_mov_b32 v{vACB+i}, 0")
    a(f"v_lshlrev_b32 v{vBP}, 4, v{vT1}")
    a.cm("P-operand masks: lane&3 selects the half-word")
    a(f"v_and_b32 v{vM0}, 1, v0")
    a(f"v_lshlrev_b32 v{vM0}, 4, v{vM0}")
    a(f"v_mov_b32 v{vD}, 0xffff")
    a(f"v_lshlrev_b32 v{vD}, v{vM0}, v{vD}")
    a(f"v_cmp_gt_u32 vcc, 2, v{vT2}")
    a("s_nop 1")
    a(f"v_cndmask_b32 v{vM0}, 0, v{vD}, vcc")
    a(f"v_cndmask_b32 v{vM1}, v{vD}, 0, vcc")
    for n in range(2 if c.pace == "V2" else 1, P):
        a.wait((c.pace[0], n - int(c.pace[1])))
        issue_tile(n, "B")
    stamp(a, c, 1)
    a("s_barrier")
    a(f"ds_read_b128 {vr(vQB)}, v{vKO} offset:{L_QB}")
    a("s_waitcnt lgkmcnt(0)")
    stamp(a, c, 2)
    for n in range(P):
        step(n, "B", "B" if n < D else None)
    q0 = list(a.q)
    def loop(label):
        a.label(label)
        for x in range(D):
            step(x, "B", "B")
        assert a.q == q0, (a.q, q0)
        a(f"s_sub_u32 s{sIT}, s{sIT}, 1")
        a(f"s_cmp_lg_u32 s{sIT}, 0")
        a(f"s_cbranch_scc1 {label}")
    n1 = (c.IA - P - D) // D
    assert n1 >= 1 and (c.IA - P - D) % D == 0 and c.IA_STAG % D == 0
    total = (S - P - D - 4) // D
    assert (S - P - D - 4) % D == 0
    a(f"s_and_b32 s6, s{sG}, 7")
    a(f"s_mul_i32 s6, s6, {c.IA_STAG // D}")
    a(f"s_add_u32 s{sIT}, s6, {n1}")
    a(f"s_sub_u32 s{sSP}, {total}, s{sIT}")
    assert total - n1 - 7 * (c.IA_STAG // D) >= 1
    loop("L_loop1")
    a.cm("A phase")
    nT = -(-(4 + D) // D) * D
    for k in range(nT):
        kind = "A" if D <= k < D + 4 else "B"
        if c.x_noA:
            if k >= 4:
                step(k % D, "B", "B")
            continue
        if k == D and not c.x_nohelp:
            w, ok = a.uid("L_qa"), a.uid("L_qaok")
            a(f"s_mov_b32 s7, {c.spin}")
            a(f"v_mov_b32 v{vT0}, {L_FLAG}")
            a.label(w)
            a(f"ds_read_b32 v{vT1}, v{vT0}")
            a("s_waitcnt lgkmcnt(0)")
            a(f"v_readfirstlane_b32 s6, v{vT1}")
            a("s_cmp_lg_u32 s6, 0")
            a(f"s_cbranch_scc1 {ok}")
            a("s_sleep 2")
            a("s_sub_u32 s7, s7, 1")
            a("s_cmp_lg_u32 s7, 0")
            a(f"s_cbranch_scc1 {w}")
            a.label(ok)
            a(f"ds_read_b128 {vr(vQA)}, v{vKO} offset:{L_QA}")
            a("s_waitcnt lgkmcnt(0)")
        step(k % D, kind, "A" if k < 4 else "B")
        if k == D + 3:
            deposit("A")
            a(f"v_mov_b32 v{vT0}, {L_FLAG + 4}")
            a(f"v_mov_b32 v{vT1}, 1")
            a(f"ds_add_u32 v{vT0}, v{vT1}")
    assert a.q == q0
    extra = nT - 4
    assert (S - (P + D) - extra) % D == 0
    a(f"s_add_u32 s{sIT}, s{sSP}, {((S - P - D - extra) // D) - total}")
    stamp(a, c, 3)
    loop("L_loop2")
    stamp(a, c, 4)
    pool = (64 - S) * 32
    tails = []
    if pool:
        a(f"s_add_u32 s{sROT}, s{sROT}, {S * 32}")
        a(f"s_mov_b32 s{sCL}, 1")
        a(f"s_atomic_add s{sCL}, s[{sCNT}:{sCNT+1}], 0 glc")
        a.label("L_dyn")
        for x in range(D):
            qk(x, "B")
            a("s_waitcnt lgkmcnt(0)")
            a(f"s_cmp_ge_u32 s{sCL}, {pool}")
            a(f"s_cbranch_scc1 L_tail{x}")
            tails.append((x, list(a.q)))
            a(f"s_add_u32 s{sPOS}, s{sROT}, s{sCL}")
            a(f"s_mov_b32 s{sCL}, 1")
            a(f"s_atomic_add s{sCL}, s[{sCNT}:{sCNT+1}], 0 glc")
            issue_addr(x, "B")
            issue_loads(x, "B", 0)
            soft_pv(x, "B")
            issue_loads(x, "B", 1)
        assert a.q == q0
        a("s_branch L_dyn")
        for x, q in tails:
            a.q = q
            a.label(f"L_tail{x}")
            a("s_nop 4")
            soft_pv(x, "B")
            for y in range(1, D):
                step((x + y) % D, "B", None)
            assert a.q == []
            a("s_branch L_sdone")
    else:
        for x in range(D):
            step(x, "B", None)
        a("s_branch L_sdone")
    for r, b, kind in late:
        rescale(r, b, kind)
    a.label("L_sdone")
    stamp(a, c, 5)
    deposit("B")
    a("s_barrier")
    stamp(a, c, 6)
    if c.diag:
        srd(a, 44, P_WS, WS_SIZE)
    diag_store(a, c, 44)
    a("s_endpgm")

H_WQ, H_X, H_WS, H_DBG, H_WO, H_OUT = 44, 48, 52, 56, 60, 64
hL16, hXO, hWO, hM0, hM1, hT0, hT1, hT2, hT3, hONE, hGO, hML, hTR, hBO, hYO, hY2 = range(1, 17)
hX, hACC, hA, hW, hG, hGML, hF = 20, 28, 36, 40, 40, 104, 128

def spin_begin(a, c):
    l = a.uid("L_spin")
    a(f"s_mov_b32 s7, {c.spin}")
    a.label(l)
    return l
def spin_end(a, c, l, ok, sleep):
    if sleep:
        a(f"s_sleep {sleep}")
    a("s_sub_u32 s7, s7, 1")
    a("s_cmp_lg_u32 s7, 0")
    a(f"s_cbranch_scc1 {l}")
    a.label(ok)

def qproj_issue(a, c, px, pw):
    srd(a, H_X, px, 4096); srd(a, H_WQ, pw, 1 << 22)
    a.vm(f"buffer_load_dwordx4 {vr(hX)}, v{hXO}, s[{H_X}:{H_X+3}], 0 offen", "x")
    a.vm(f"buffer_load_dwordx4 {vr(hX+4)}, v{hXO}, s[{H_X}:{H_X+3}], 0 offen offset:16", "x")
    a("s_mov_b32 s6, 0")
    for u in range(16):
        a.vm(f"buffer_load_dwordx4 {vr(hW+4*u)}, v{hWO}, s[{H_WQ}:{H_WQ+3}], s6 offen {c.ld}", ("w", u))
        if u < 15:
            a("s_add_u32 s6, s6, 8192")

def qproj_compute(a, c, ws_off):
    a("s_mov_b32 s8, 0x01000100"); a("s_mov_b32 s9, 0x03020302")
    for u in range(16):
        r = hA + 2 * (u & 1)
        if u % 4 == 0:
            a.wait(("w", u + 3))
        a(f"v_perm_b32 v{hT0}, v{hX + (u >> 1)}, v{hX + (u >> 1)}, s{8 + (u & 1)}")
        a(f"v_and_b32 v{r}, v{hT0}, v{hM0}")
        a(f"v_and_b32 v{r+1}, v{hT0}, v{hM1}")
        a("s_nop 1")
        c0 = "0" if u == 0 else vr(hACC); c1 = "0" if u == 0 else vr(hACC + 4)
        a(f"v_mfma_f32_16x16x16_bf16 {vr(hACC)}, {vr(r,2)}, {vr(hW+4*u,2)}, {c0}")
        a(f"v_mfma_f32_16x16x16_bf16 {vr(hACC+4)}, {vr(r,2)}, {vr(hW+4*u+2,2)}, {c1}")
    a(f"s_lshl_b32 s6, s2, 11"); a(f"s_add_u32 s6, s6, 0x{ws_off:x}")
    a("s_nop 6")
    a.vm(f"buffer_store_dwordx4 {vr(hACC)}, v{hL16}, s[{H_WS}:{H_WS+3}], s6 offen sc1", "st")
    a.vm(f"buffer_store_dwordx4 {vr(hACC+4)}, v{hL16}, s[{H_WS}:{H_WS+3}], s6 offen offset:1024 sc1", "st")
    a.waitall()

sFL = 68

def arrive_group(a, c):
    a(f"s_and_b32 s6, s{sG}, 1"); a("s_lshl_b32 s6, s6, 7")
    a(f"s_lshr_b32 s8, s{sG}, 1"); a("s_lshl_b32 s8, s8, 2"); a("s_add_u32 s6, s6, s8")
    a("s_mov_b32 s8, 1")
    a(f"s_atomic_add s8, s[{P_DBG}:{P_DBG+1}], s6 glc")
    a("s_waitcnt lgkmcnt(0)")
    a("s_cmp_lg_u32 s8, 7")
    a("s_cbranch_scc1 L_poll_group")
    a("s_mov_b32 s72, 1")
    for p in range(8):
        a(f"s_atomic_add s72, s[{sFL+2}:{sFL+3}], {p * FLAG_STRIDE}")
    a("s_branch L_group_ready")
    a.label("L_poll_group")
    poll_flag(a, c, 0, c.poll_sleep)
    a.label("L_group_ready")

def arrive_all(a, c):
    a("s_mov_b32 s8, 1")
    a(f"s_atomic_add s8, s[{P_DBG}:{P_DBG+1}], 64 glc")
    a("s_waitcnt lgkmcnt(0)")
    a("s_cmp_lg_u32 s8, 255")
    a("s_cbranch_scc1 L_not_last")
    a(f"v_lshlrev_b32 v{hT1}, 10, v0")
    for p in range(4):
        a(f"s_mov_b32 s6, 0x{WS_FLAG + p * 64 * FLAG_STRIDE:x}")
        a(f"buffer_store_dword v{hONE}, v{hT1}, s[{H_WS}:{H_WS+3}], s6 offen offset:4 sc1")
    a("s_waitcnt vmcnt(0)")
    a.label("L_not_last")

def poll_flag(a, c, off, sleep):
    l = spin_begin(a, c); ok = a.uid("L_ok")
    a("s_mov_b32 s8, 0")
    a(f"s_atomic_add s8, s[{sFL}:{sFL+1}], {off} glc")
    a("s_waitcnt lgkmcnt(0)")
    a("s_cmp_lg_u32 s8, 0")
    a(f"s_cbranch_scc1 {ok}")
    spin_end(a, c, l, ok, sleep)

def q_gather(a, c, vaddr, sbase, lds):
    for p in range(8):
        if p % 2 == 0:
            a(f"s_add_u32 s6, {sbase}, {p * 2048}")
        for h in range(2):
            a.vm(f"buffer_load_dwordx4 {vr(hG+8*p+4*h)}, v{vaddr}, s[{H_WS}:{H_WS+3}], s6 offen offset:{(p%2)*2048+h*1024} {c.qg_flags}", ("g", p))
    a.wait(("g", 1))
    for i in range(8):
        a(f"v_add_f32 v{hACC+i}, v{hG+i}, v{hG+8+i}")
    for p in range(2, 8):
        a.wait(("g", p))
        for i in range(8):
            a(f"v_add_f32 v{hACC+i}, v{hACC+i}, v{hG+8*p+i}")
    for i in range(4):
        a(f"v_cvt_pk_bf16_f32 v{hA+i}, v{hACC+2*i}, v{hACC+2*i+1}")
    a(f"ds_write_b128 v{hL16}, {vr(hA)} offset:{lds}")
    a("s_waitcnt lgkmcnt(0)")

def combine(a, n, obase, mlbase, ostride, mlstride):
    mn = [mlbase + mlstride * p for p in range(n)]
    a(f"v_min3_f32 v{hT0}, v{mn[0]}, v{mn[1]}, v{mn[2]}")
    k = 3
    while k + 1 < n:
        a(f"v_min3_f32 v{hT0}, v{hT0}, v{mn[k]}, v{mn[k+1]}"); k += 2
    if k < n:
        a(f"v_min_f32 v{hT0}, v{hT0}, v{mn[k]}")
    for p in range(n):
        a(f"v_sub_f32 v{mn[p]}, v{hT0}, v{mn[p]}")
    for p in range(n):
        a(f"v_exp_f32 v{mn[p]}, v{mn[p]}")
    a(f"v_mul_f32 v{hT1}, v{mn[0]}, v{mn[0]+1}")
    for i in range(8):
        a(f"v_mul_f32 v{hACC+i}, v{obase+i}, v{mn[0]}")
    for p in range(1, n):
        a(f"v_fmac_f32 v{hT1}, v{mn[p]}, v{mn[p]+1}")
        for i in range(8):
            a(f"v_fmac_f32 v{hACC+i}, v{obase+ostride*p+i}, v{mn[p]}")

def frag_read(a, lds):
    for ct in range(4):
        for s in range(4):
            for hf in range(2):
                a(f"ds_read_b64_tr_b16 {vr(hF + (ct*4+s)*4 + 2*hf, 2)}, v{hTR} offset:{lds + s*4096 + hf*512 + ct*32}")
            if s % 2 == 1:
                a("s_waitcnt lgkmcnt(0)")

def epilogue(a, c, kind):
    dep, ml, wo, wy = (L_DEPB, L_MLB, WS_OB, WS_YB) if kind == "B" else (L_DEPA, L_MLA, WS_OA, WS_YA)
    a.cm(f"{kind}: merge the four waves' partials")
    for w in range(4):
        a(f"ds_read_b128 {vr(hG+8*w)}, v{hL16} offset:{dep + w*2048}")
        a(f"ds_read_b128 {vr(hG+8*w+4)}, v{hL16} offset:{dep + w*2048 + 1024}")
        a(f"ds_read_b64 {vr(hGML+2*w,2)}, v{hML} offset:{ml + w*32}")
    a(f"s_lshl_b32 s6, s2, 12"); a(f"s_add_u32 s6, s6, 0x{wo:x}")
    a("s_waitcnt lgkmcnt(0)")
    combine(a, 4, hG, hGML, 8, 2)
    a.vm(f"buffer_store_dwordx4 {vr(hACC)}, v{hL16}, s[{H_WS}:{H_WS+3}], s6 offen sc1", "st")
    a.vm(f"buffer_store_dwordx4 {vr(hACC+4)}, v{hL16}, s[{H_WS}:{H_WS+3}], s6 offen offset:1024 sc1", "st")
    a("s_mov_b32 exec_lo, 0x00010001"); a("s_mov_b32 exec_hi, 0x00010001")
    a.vm(f"buffer_store_dwordx2 {vr(hT0,2)}, v{hML}, s[{H_WS}:{H_WS+3}], s6 offen offset:2048 sc1", "st")
    a("s_mov_b64 exec, -1")
    a.cm("gather the eight workgroup partials")
    if kind == "B":
        a(f"s_lshl_b32 s8, s{sG}, 15"); a(f"s_add_u32 s8, s8, 0x{wo:x}")
        va, vm = hL16, hML
    else:
        a(f"s_mov_b32 s8, 0x{wo:x}")
        a(f"v_lshlrev_b32 v{hT2}, 1, v{hGO}")
        a(f"v_and_b32 v{hT3}, 0x3ff, v{hGO}")
        a(f"v_sub_u32 v{hT2}, v{hT2}, v{hT3}")
        a(f"v_sub_u32 v{hA}, v{hT2}, v{hT3}")
        a(f"s_and_b32 s9, s{sG}, 3"); a("s_lshl_b32 s9, s9, 3")
        a(f"v_add_u32 v{hA}, s9, v{hA}")
        va, vm = hT2, hA
    gf = c.gather_flags
    def loads(p):
        a(f"s_add_u32 s6, s8, {p * 4096}")
        a(f"buffer_load_dwordx4 {vr(hG+8*p)}, v{va}, s[{H_WS}:{H_WS+3}], s6 offen {gf}")
        a(f"buffer_load_dwordx4 {vr(hG+8*p+4)}, v{va}, s[{H_WS}:{H_WS+3}], s6 offen offset:1024 {gf}")
        a(f"buffer_load_dwordx2 {vr(hGML+2*p,2)}, v{vm}, s[{H_WS}:{H_WS+3}], s6 offen offset:2048 {gf}")
    def check(p):
        r = [hG + 8*p + i for i in range(8)] + [hGML + 2*p, hGML + 2*p + 1]
        a(f"v_max3_u32 v{hT3}, v{r[0]}, v{r[1]}, v{r[2]}")
        for i in range(3, 9, 2):
            a(f"v_max3_u32 v{hT3}, v{hT3}, v{r[i]}, v{r[i+1]}")
        a(f"v_max_u32 v{hT3}, v{hT3}, v{r[9]}")
        a(f"v_cmp_eq_u32 vcc, -1, v{hT3}")
    if kind == "A" and c.a_delay:
        a(f"s_sleep {c.a_delay}")
    for p in range(8):
        loads(p)
    a("s_mov_b32 s9, 0")
    for p in range(8):
        a(f"s_waitcnt vmcnt({3*(7-p)})")
        check(p)
        a("s_cmp_lg_u64 vcc, 0")
        a(f"s_cselect_b32 s6, {1 << p}, 0")
        a("s_or_b32 s9, s9, s6")
    ok = a.uid("L_ok")
    a(f"s_cbranch_scc0 {ok}")
    l = spin_begin(a, c)
    if kind == "A":
        a(f"s_sleep {c.a_sleep}")
    for p in range(8):
        sk = a.uid("L_sk")
        a(f"s_bitcmp1_b32 s9, {p}")
        a(f"s_cbranch_scc0 {sk}")
        loads(p)
        a.label(sk)
    a("s_waitcnt vmcnt(0)")
    for p in range(8):
        sk = a.uid("L_sk")
        a(f"s_bitcmp1_b32 s9, {p}")
        a(f"s_cbranch_scc0 {sk}")
        check(p)
        a(f"s_cbranch_vccnz {sk}")
        a(f"s_bitset0_b32 s9, {p}")
        a.label(sk)
    a("s_cmp_eq_u32 s9, 0")
    a(f"s_cbranch_scc1 {ok}")
    spin_end(a, c, l, ok, 0)
    a.q = []
    if kind == "B": stamp(a, c, 5)
    combine(a, 8, hG, hGML, 8, 2)
    a(f"v_rcp_f32 v{hT1}, v{hT1}")
    a("s_nop 0")
    for i in range(8):
        a(f"v_mul_f32 v{hACC+i}, v{hACC+i}, v{hT1}")
    for i in range(4):
        a(f"v_cvt_pk_bf16_f32 v{hA+i}, v{hACC+2*i}, v{hACC+2*i+1}")
    a(f"ds_write_b128 v{hL16}, {vr(hA)} offset:{L_OT}")
    a("s_waitcnt lgkmcnt(0)")
    for s in range(4):
        a(f"ds_read_b128 {vr(hG+4*s)}, v{hBO} offset:{L_OT + s*64}")
    a.cm("output projection of this workgroup's 64 columns")
    for s in range(4):
        a(f"s_waitcnt lgkmcnt({3-s})")
        for ct in range(4):
            cc = "0" if s == 0 else vr(hG + 16 + 4*ct)
            a(f"v_mfma_f32_16x16x32_bf16 {vr(hG+16+4*ct)}, {vr(hF+(ct*4+s)*4)}, {vr(hG+4*s)}, {cc}")
    a(f"s_lshl_b32 s6, s{sJ}, 10"); a(f"s_lshl_b32 s9, s{sG}, 5"); a("s_add_u32 s6, s6, s9")
    a(f"s_add_u32 s6, s6, 0x{wy:x}")
    a("s_mov_b32 exec_lo, 0x000f000f"); a("s_mov_b32 exec_hi, 0x000f000f")
    for ct in range(4):
        a.vm(f"buffer_store_dwordx4 {vr(hG+16+4*ct)}, v{hYO}, s[{H_WS}:{H_WS+3}], s6 offen sc1", "st")
        if ct < 3:
            a("s_add_u32 s6, s6, 65536")
            a("s_nop 1")
    a("s_mov_b64 exec, -1")
    a.cm("sum the 32 heads for eight outputs")
    a(f"s_lshl_b32 s6, s2, 10"); a(f"s_add_u32 s6, s6, 0x{wy:x}")
    l = spin_begin(a, c); ok = a.uid("L_ok")
    a(f"buffer_load_dwordx4 {vr(hG)}, v{hY2}, s[{H_WS}:{H_WS+3}], s6 offen sc1")
    a("s_waitcnt vmcnt(0)")
    a(f"v_max3_u32 v{hT3}, v{hG}, v{hG+1}, v{hG+2}")
    a(f"v_max_u32 v{hT3}, v{hT3}, v{hG+3}")
    a(f"v_cmp_eq_u32 vcc, -1, v{hT3}")
    a(f"s_cbranch_vccz {ok}")
    spin_end(a, c, l, ok, 0 if kind == "B" else c.a_sleep)
    a.q = []
    for ctl in ("row_shr:1 row_mask:0xf bank_mask:0xf bound_ctrl:1", "row_shr:2 row_mask:0xf bank_mask:0xf bound_ctrl:1",
                "row_shr:4 row_mask:0xf bank_mask:0xf bound_ctrl:1", "row_shr:8 row_mask:0xf bank_mask:0xf bound_ctrl:1",
                "row_bcast:15 row_mask:0xa bank_mask:0xf"):
        for i in range(4):
            a(f"v_add_f32_dpp v{hG+i}, v{hG+i}, v{hG+i} {ctl}")
    a(f"v_cvt_pk_bf16_f32 v{hA}, v{hG}, v{hG+1}")
    a(f"v_cvt_pk_bf16_f32 v{hA+1}, v{hG+2}, v{hG+3}")
    a(f"s_and_b32 s6, s{sG}, 3"); a("s_lshl_b32 s6, s6, 11")
    a(f"s_lshr_b32 s9, s{sG}, 2"); a("s_lshl_b32 s9, s9, 4"); a("s_add_u32 s6, s6, s9")
    a(f"s_lshl_b32 s9, s{sJ}, 7"); a("s_add_u32 s6, s6, s9")
    a(f"v_lshrrev_b32 v{hT2}, 5, v0"); a(f"v_lshlrev_b32 v{hT2}, 3, v{hT2}")
    a("s_mov_b32 exec_lo, 0x80000000"); a("s_mov_b32 exec_hi, 0x80000000")
    a.vm(f"buffer_store_dwordx2 {vr(hA,2)}, v{hT2}, s[{H_OUT}:{H_OUT+3}], s6 offen offset:{1024 if kind == 'B' else 0} {c.out_flags}", "st")
    a("s_mov_b64 exec, -1")

def helper(a, c):
    a.label("L_helper")
    a.q = []
    stamp(a, c, 0)
    if c.x_nohelp:
        a("s_waitcnt lgkmcnt(0)")
        srd(a, H_WS, P_WS, WS_SIZE)
        a(f"s_mul_i32 s6, s{sG}, {CNT_STRIDE}"); a(f"s_add_u32 s6, s6, 0x{WS_CNT:x}")
        a("v_mov_b32 v1, 0")
        a(f"buffer_store_dword v1, v1, s[{H_WS}:{H_WS+3}], s6 offen sc1")
        a("s_barrier"); a("s_barrier"); a("s_barrier")
        for k in range(1, 7):
            stamp(a, c, k)
        diag_store(a, c, H_WS)
        a("s_endpgm")
        return
    a("s_setprio 2")
    a(f"v_lshrrev_b32 v{hT0}, 4, v0")
    a(f"v_and_b32 v{hT1}, 15, v0")
    a(f"v_bfe_u32 v{hT2}, v0, 2, 2")
    a(f"s_lshl_b32 s6, s{sJ}, 7")
    a(f"v_lshl_add_u32 v{hXO}, v{hT2}, 10, s6")
    a(f"v_lshl_add_u32 v{hXO}, v{hT0}, 5, v{hXO}")
    a(f"s_lshl_b32 s6, s{sJ}, 19"); a(f"s_lshl_b32 s7, s{sG}, 8"); a("s_add_u32 s6, s6, s7")
    a(f"v_lshl_add_u32 v{hWO}, v{hT0}, 17, s6")
    a(f"v_lshl_add_u32 v{hWO}, v{hT1}, 4, v{hWO}")
    a("s_waitcnt lgkmcnt(0)")
    qproj_issue(a, c, P_BX, P_BWQ)
    a("s_barrier")
    srd(a, H_WS, P_WS, WS_SIZE); srd(a, H_DBG, P_DBG, 256); srd(a, H_OUT, P_OUT, 8192)
    a(f"v_lshlrev_b32 v{hL16}, 4, v0")
    a(f"v_lshlrev_b32 v{hML}, 3, v{hT0}")
    a(f"v_mov_b32 v{hONE}, 1")
    a(f"v_mov_b32 v{hF+4}, 0"); a(f"v_mov_b32 v{hF+5}, 0")
    a(f"s_lshl_b32 s6, s2, 10"); a(f"s_add_u32 s6, s6, 0x{WS_FLAG:x}")
    a("s_mov_b64 exec, 1")
    a.vm(f"buffer_store_dwordx2 {vr(hF+4,2)}, v{hL16}, s[{H_WS}:{H_WS+3}], s6 offen sc1", "clr")
    a("s_mov_b64 exec, -1")
    a(f"s_add_u32 s{sFL}, s{P_WS}, s6"); a(f"s_addc_u32 s{sFL+1}, s{P_WS+1}, 0")
    a(f"s_lshl_b32 s6, s{sG}, 13"); a(f"s_add_u32 s6, s6, 0x{WS_FLAG:x}")
    a(f"s_add_u32 s{sFL+2}, s{P_WS}, s6"); a(f"s_addc_u32 s{sFL+3}, s{P_WS+1}, 0")
    a(f"v_mov_b32 v{hT3}, {L_FLAG}")
    a(f"ds_write_b64 v{hT3}, {vr(hF+4,2)}")
    a(f"v_and_b32 v{hM0}, 1, v0")
    a(f"v_lshlrev_b32 v{hM0}, 4, v{hM0}")
    a(f"v_mov_b32 v{hT3}, 0xffff")
    a(f"v_lshlrev_b32 v{hT3}, v{hM0}, v{hT3}")
    a(f"v_and_b32 v{hM1}, 2, v0")
    a(f"v_cmp_eq_u32 vcc, 0, v{hM1}")
    a("s_nop 1")
    a(f"v_cndmask_b32 v{hM0}, 0, v{hT3}, vcc")
    a(f"v_cndmask_b32 v{hM1}, v{hT3}, 0, vcc")
    a.cm("per-lane addresses used later")
    a(f"s_and_b32 s6, s{sG}, 28"); a("s_lshl_b32 s6, s6, 14")
    a(f"s_and_b32 s7, s{sG}, 3"); a("s_lshl_b32 s7, s7, 8"); a("s_add_u32 s6, s6, s7")
    a(f"v_lshl_add_u32 v{hGO}, v{hT0}, 14, s6")
    a(f"v_lshl_add_u32 v{hGO}, v{hT1}, 4, v{hGO}")
    a(f"v_lshlrev_b32 v{hTR}, 10, v{hT0}")
    a(f"v_lshl_add_u32 v{hTR}, v{hT2}, 7, v{hTR}")
    a(f"v_and_b32 v{hT3}, 3, v0")
    a(f"v_lshl_add_u32 v{hTR}, v{hT3}, 3, v{hTR}")
    a(f"v_lshlrev_b32 v{hBO}, 8, v{hT3}")
    a(f"v_lshl_add_u32 v{hBO}, v{hT0}, 4, v{hBO}")
    a(f"v_lshlrev_b32 v{hYO}, 13, v{hT3}")
    a(f"v_lshrrev_b32 v{hT3}, 5, v0")
    a(f"v_lshl_add_u32 v{hYO}, v{hT3}, 15, v{hYO}")
    a(f"v_and_b32 v{hT2}, 1, v{hT0}")
    a(f"v_lshl_add_u32 v{hYO}, v{hT2}, 4, v{hYO}")
    a(f"v_and_b32 v{hY2}, 31, v0")
    a(f"v_lshlrev_b32 v{hY2}, 5, v{hY2}")
    a(f"v_lshl_add_u32 v{hY2}, v{hT3}, 4, v{hY2}")
    qproj_compute(a, c, WS_QB)
    stamp(a, c, 1)
    arrive_group(a, c)
    stamp(a, c, 4)
    a(f"s_lshl_b32 s8, s{sG}, 14"); a(f"s_add_u32 s8, s8, 0x{WS_QB:x}")
    q_gather(a, c, hL16, "s8", L_QB)
    a("s_barrier")
    stamp(a, c, 2)
    a("s_setprio 0")
    a.cm("q of branch A")
    qproj_issue(a, c, P_AX, P_AWQ)
    a.cm("mark every hand-off word of the epilogues as not written")
    for i in range(4):
        a(f"v_mov_b32 v{hF+i}, -1")
    a(f"v_mov_b32 v{hF+4}, 0"); a(f"v_mov_b32 v{hF+5}, 0")
    for base in (WS_OB, WS_OA):
        a(f"s_lshl_b32 s6, s2, 12"); a(f"s_add_u32 s6, s6, 0x{base:x}")
        for o in (0, 1024, 2048):
            a.vm(f"buffer_store_dwordx4 {vr(hF)}, v{hL16}, s[{H_WS}:{H_WS+3}], s6 offen offset:{o} sc1", "clr")
    for base in (WS_YB, WS_YA):
        a(f"s_lshl_b32 s6, s2, 10"); a(f"s_add_u32 s6, s6, 0x{base:x}")
        a.vm(f"buffer_store_dwordx4 {vr(hF)}, v{hL16}, s[{H_WS}:{H_WS+3}], s6 offen sc1", "clr")
    a(f"s_mul_i32 s6, s{sG}, {CNT_STRIDE}"); a(f"s_add_u32 s6, s6, 0x{WS_CNT:x}")
    a(f"s_cmp_eq_u32 s{sJ}, 0")
    a(f"s_cselect_b32 s6, s6, 0x{WS_SIZE:x}")
    a("s_mov_b64 exec, 1")
    a.vm(f"buffer_store_dword v{hF+4}, v{hL16}, s[{H_WS}:{H_WS+3}], s6 offen sc1", "clr")
    a("s_mov_b64 exec, -1")
    qproj_compute(a, c, WS_QA)
    arrive_all(a, c)
    a.cm("stage both wo tiles in LDS")
    a(f"v_lshrrev_b32 v{hT0}, 3, v0"); a(f"v_and_b32 v{hT1}, 7, v0")
    a(f"s_lshl_b32 s6, s{sG}, 17"); a(f"s_lshl_b32 s7, s{sJ}, 7"); a("s_add_u32 s6, s6, s7")
    a(f"v_lshl_add_u32 v{hT0}, v{hT0}, 10, s6")
    a(f"v_lshl_add_u32 v{hT0}, v{hT1}, 4, v{hT0}")
    for p, lds in ((P_AWO, L_WOA), (P_BWO, L_WOB)):
        srd(a, H_WO, p, 1 << 22)
        for u in range(16):
            a(f"s_mov_b32 m0, {lds + u * 1024}")
            a(f"s_mov_b32 s6, {u * 8192}")
            a.vm(f"buffer_load_dwordx4 v{hT0}, s[{H_WO}:{H_WO+3}], s6 offen {c.ld} lds", "wo")
            if u % 4 == 3:
                a.waitall()
    a.cm("every workgroup has published q of A and marked its hand-off words")
    poll_flag(a, c, 4, 16)
    a(f"s_mov_b32 s8, 0x{WS_QA:x}")
    q_gather(a, c, hGO, "s8", L_QA)
    a(f"v_mov_b32 v{hT3}, {L_FLAG}")
    a(f"ds_write_b32 v{hT3}, v{hONE}")
    frag_read(a, L_WOA)
    l = spin_begin(a, c); ok = a.uid("L_ok")
    a(f"v_mov_b32 v{hT3}, {L_FLAG + 4}")
    a(f"ds_read_b32 v{hT1}, v{hT3}")
    a("s_waitcnt lgkmcnt(0)")
    a(f"v_cmp_gt_u32 vcc, 0x100, v{hT1}")
    a(f"s_cbranch_vccz {ok}")
    spin_end(a, c, l, ok, 8)
    epilogue(a, c, "A")
    frag_read(a, L_WOB)
    a.waitall()
    a("s_setprio 2")
    a("s_barrier")
    stamp(a, c, 3)
    epilogue(a, c, "B")
    if c.diag:
        a("s_waitcnt vmcnt(0)")
        stamp(a, c, 6)
    diag_store(a, c, H_WS)
    a("s_endpgm")

def generate(c):
    a = Asm()
    hdr = open("concat_heads__sliding_block_cached__mha_block_cached__decode.s.ref").read().split("\n")
    for line in hdr:
        if line.startswith("; @launch"):
            break
        a.o.append(line)
    a.o.append(f"; @launch grid=(256,1,1) block=(320,1,1) lds={L_END}")
    a.o += ['.amdgcn_target "amdgcn-amd-amdhsa--gfx950"', ".text", f".globl {c.name}", ".p2align 8",
            f".type {c.name},@function", f"{c.name}:"]
    a("s_cmp_ge_u32 s2, 256")
    a("s_cbranch_scc1 L_exit")
    a("s_load_dwordx16 s[16:31], s[0:1], 0")
    a("s_load_dwordx8 s[32:39], s[0:1], 64")
    a("s_load_dwordx2 s[40:41], s[0:1], 96")
    a("v_lshrrev_b32 v1, 6, v0")
    a("v_and_b32 v0, 63, v0")
    a(f"s_lshr_b32 s{sG}, s2, 3")
    a(f"v_readfirstlane_b32 s{sW}, v1")
    a(f"s_and_b32 s{sJ}, s2, 7")
    a(f"s_cmp_eq_u32 s{sW}, 0")
    a("s_cbranch_scc1 L_helper")
    streamer(a, c)
    helper(a, c)
    a.label("L_exit")
    a("s_endpgm")
    a.o += ['.section .rodata,"a"', ".p2align 6", f".amdhsa_kernel {c.name}",
            "  .amdhsa_next_free_vgpr 256", "  .amdhsa_next_free_sgpr 102", "  .amdhsa_accum_offset 256",
            "  .amdhsa_group_segment_fixed_size 0", "  .amdhsa_kernarg_size 104", "  .amdhsa_user_sgpr_count 2",
            "  .amdhsa_user_sgpr_kernarg_segment_ptr 1", "  .amdhsa_system_sgpr_workgroup_id_x 1", ".end_amdhsa_kernel"]
    return "\n".join(a.o) + "\n"

def make(**kw):
    c = Cfg()
    for k, v in kw.items():
        assert hasattr(c, k), k
        setattr(c, k, v)
    return generate(c)

if __name__ == "__main__":
    out = sys.argv[1] if len(sys.argv) > 1 else "concat_heads__sliding_block_cached__mha_block_cached__decode.s"
    kw = eval("dict(" + (sys.argv[2] if len(sys.argv) > 2 else "") + ")")
    open(out, "w").write(make(**kw))
```
